```python
import torch

def _softmax(x, axis=-1):
    return torch.softmax(x, dim=axis)
def _gelu(x):
    return torch.nn.functional.gelu(x, approximate="tanh")
def _silu(x):
    return torch.nn.functional.silu(x)
def _sigmoid(x):
    return torch.sigmoid(x)
def _layernorm(x, axis=-1, eps=1e-5):
    m = x.mean(dim=axis, keepdim=True)
    v = x.var(dim=axis, keepdim=True, unbiased=False)
    return (x - m) / torch.sqrt(v + eps)
def _scatter_add(tgt, idx, src, axis=0):
    return tgt.clone().index_add_(axis, idx, src)
def _segment_sum(src, seg, n):
    out = torch.zeros((n,) + src.shape[1:], dtype=src.dtype)
    return out.index_add_(0, seg, src)
def _pad(x, pw):
    flat = tuple(v for pair in reversed(pw) for v in pair)
    return torch.nn.functional.pad(x, flat)

kernel_name = 'standalone__batchnorm__sampling'

def setup_inputs():

    _w = (lambda a: (lambda t: t.to(torch.bfloat16) if t.is_floating_point() else t)(torch.as_tensor(a)))
    B, S, C = 1024, 1, 1024
    K = 3
    return {
        "x": _w((lambda *s: torch.randn(*s, dtype=torch.bfloat16) * 0.05)(B, S, C)),
        "w": _w((lambda *s: torch.randn(*s, dtype=torch.bfloat16) * 0.05)(K, C, C) * (1.0 / (K * C) ** 0.5)),
        "mean": _w((lambda *s: torch.randn(*s, dtype=torch.bfloat16) * 0.05)(C) * 0.1),
        "var": _w(torch.abs((lambda *s: torch.randn(*s, dtype=torch.bfloat16) * 0.05)(C)) + 0.5),
        "g": _w((lambda *s: torch.randn(*s, dtype=torch.bfloat16) * 0.05)(C) + 1.0),
        "b": _w((lambda *s: torch.randn(*s, dtype=torch.bfloat16) * 0.05)(C) * 0.1),
    }

def reference(x, w, mean, var, g, b):
    K = 3
    P = K // 2
    S = x.shape[1]
    xp = _pad(x, ((0, 0), (P, P), (0, 0)))
    y = sum(torch.einsum('bsc,cd->bsd', xp[:, k:k + S, :], w[k]) for k in range(K))
    inv_std = 1.0 / torch.sqrt(var + 1e-5)
    y = (y - mean) * (g * inv_std) + b
    return _silu(y)
```

```python
HEADER = """; Kernarg layout for this problem (72 bytes, ptrs only, base s[0:1]):
; @launch grid=({grid},1,1) block=({block},1,1) lds={lds}
{notes}.amdgcn_target "amdgcn-amd-amdhsa--gfx950"
.text
.globl standalone__batchnorm__sampling_kernel
.p2align 8
.type standalone__batchnorm__sampling_kernel,@function
standalone__batchnorm__sampling_kernel:
"""

FOOTER = """.section .rodata,"a"
.p2align 6
.amdhsa_kernel standalone__batchnorm__sampling_kernel
  .amdhsa_next_free_vgpr {vgpr}
  .amdhsa_next_free_sgpr {sgpr}
  .amdhsa_accum_offset {accum}
  .amdhsa_group_segment_fixed_size 0
  .amdhsa_kernarg_size 72
  .amdhsa_user_sgpr_count 2
  .amdhsa_user_sgpr_kernarg_segment_ptr 1
  .amdhsa_system_sgpr_workgroup_id_x 1
{extra}.end_amdhsa_kernel
"""


class Asm:
    def __init__(self):
        self.lines = []

    def __call__(self, s=""):
        for l in s.split("\n"):
            l = l.strip()
            if not l:
                continue
            if l.endswith(":"):
                self.lines.append(l)
            else:
                self.lines.append("    " + l)

    def text(self):
        return "\n".join(self.lines) + "\n"


def wrap(body, grid, block, lds, vgpr, sgpr, accum=None, notes="", extra=""):
    if accum is None:
        accum = (vgpr + 3) // 4 * 4
    return (HEADER.format(grid=grid, block=block, lds=lds, notes=notes) + body +
            FOOTER.format(vgpr=vgpr, sgpr=sgpr, accum=accum, extra=extra))
```

```python
import sys
from common import *

NSLOT = 10
SLOT = 16384
NB = 16

def gen(nslot=NSLOT):
    a = Asm()
    a("""
    s_cmp_ge_u32 s2, 256
    s_cbranch_scc1 L_end
    s_load_dwordx2 s[8:9], s[0:1], 0
    s_load_dwordx2 s[12:13], s[0:1], 8
    s_load_dwordx8 s[16:23], s[0:1], 16
    s_load_dwordx2 s[24:25], s[0:1], 48
    s_mov_b32 s10, 0x200000
    s_mov_b32 s11, 0x20000
    s_mov_b32 s14, 0x600000
    s_mov_b32 s15, 0x20000
    s_mov_b32 s26, 0x200000
    s_mov_b32 s27, 0x20000
    s_and_b32 s3, s2, 7
    s_lshr_b32 s4, s2, 3
    s_lshr_b32 s5, s3, 1
    s_lshl_b32 s5, s5, 2
    s_lshr_b32 s6, s4, 3
    s_add_u32 s5, s5, s6
    s_and_b32 s6, s3, 1
    s_lshl_b32 s6, s6, 3
    s_and_b32 s7, s4, 7
    s_add_u32 s6, s6, s7
    """)
    a("""
    v_lshrrev_b32 v1, 6, v0
    v_and_b32 v2, 63, v0
    s_nop 0
    v_readfirstlane_b32 s28, v1
    v_lshrrev_b32 v3, 3, v2
    v_and_b32 v4, 7, v2
    v_lshrrev_b32 v5, 4, v2
    s_lshl_b32 s29, s5, 17
    s_lshl_b32 s30, s28, 15
    s_add_u32 s29, s29, s30
    v_xor_b32 v6, v4, v5
    v_lshlrev_b32 v6, 4, v6
    v_lshl_add_u32 v6, v3, 11, v6
    v_add_u32 v10, s29, v6
    v_xor_b32 v11, 64, v10
    v_add_u32 v11, 15360, v11
    v_and_b32 v7, 1, v5
    v_lshlrev_b32 v7, 2, v7
    v_xor_b32 v7, v4, v7
    v_lshlrev_b32 v7, 4, v7
    v_lshl_add_u32 v7, v3, 11, v7
    s_lshl_b32 s31, s6, 7
    s_add_u32 s31, s31, s30
    s_add_u32 s31, s31, 0x200000
    v_add_u32 v12, s31, v7
    v_add_u32 v13, 15360, v12
    s_lshl_b32 s32, s28, 11
    """)
    a("""
    s_lshr_b32 s33, s28, 1
    s_and_b32 s34, s28, 1
    v_and_b32 v14, 31, v2
    v_lshrrev_b32 v15, 5, v2
    v_lshrrev_b32 v16, 1, v14
    v_and_b32 v16, 7, v16
    v_xor_b32 v16, v16, v15
    v_lshlrev_b32 v16, 4, v16
    v_lshl_add_u32 v16, v14, 7, v16
    s_lshl_b32 s35, s33, 12
    v_add_u32 v20, s35, v16
    v_xor_b32 v21, 32, v20
    v_xor_b32 v22, 64, v20
    v_xor_b32 v23, 96, v20
    """)
    a("""
    v_and_b32 v17, 3, v2
    v_bfe_u32 v18, v2, 2, 2
    v_and_b32 v19, 1, v17
    v_lshlrev_b32 v19, 4, v19
    v_lshrrev_b32 v17, 1, v17
    v_lshl_add_u32 v19, v17, 3, v19
    v_and_b32 v17, 1, v5
    v_lshl_add_u32 v19, v17, 5, v19
    v_lshrrev_b32 v17, 1, v18
    v_xor_b32 v17, s34, v17
    v_lshl_add_u32 v19, v17, 6, v19
    v_lshl_add_u32 v19, v18, 7, v19
    v_lshl_add_u32 v24, v15, 10, v19
    v_add_u32 v24, 8192, v24
    """)
    for base, add in ((25, 65536), (30, 131072)):
        for i in range(5):
            a(f"v_add_u32 v{base+i}, {add}, v{20+i}")
    for i in range(16):
        a(f"v_mov_b32 v{64+i}, 0")
    a("s_waitcnt lgkmcnt(0)")

    def dma(kb):
        slot = kb % nslot
        a(f"s_add_u32 m0, s32, {slot*SLOT}")
        a(f"s_mov_b32 s36, {kb*128}")
        a(f"buffer_load_dwordx4 v10, s[8:11], s36 offen lds")
        a(f"buffer_load_dwordx4 v11, s[8:11], s36 offen offset:1024 lds")
        a(f"s_add_u32 m0, s32, {slot*SLOT+8192}")
        a(f"s_mov_b32 s37, {kb*64*2048}")
        a(f"buffer_load_dwordx4 v12, s[12:15], s37 offen lds")
        a(f"buffer_load_dwordx4 v13, s[12:15], s37 offen offset:1024 lds")

    for kb in range(nslot):
        dma(kb)
    a("""
    s_lshl_b32 s38, s6, 7
    v_lshl_add_u32 v40, v2, 1, s38
    global_load_ushort v41, v40, s[16:17]
    global_load_ushort v42, v40, s[18:19]
    global_load_ushort v43, v40, s[20:21]
    global_load_ushort v44, v40, s[22:23]
    """)
    ops = []
    for kb in range(nslot):
        ops += [kb] * 4
    ops += ['p'] * 4

    def vm_for(tag):
        last = max(i for i, o in enumerate(ops) if o == tag)
        return len(ops) - 1 - last

    def addr(idx, off):
        hi = off >> 16
        base = (20, 25, 30)[hi]
        return f"v{base+idx}", off & 0xffff

    def reads(kb, rs):
        slot = kb % nslot
        for s in range(4):
            v, o = addr(s, slot * SLOT)
            a(f"ds_read_b128 v[{rs+8*s}:{rs+8*s+3}], {v} offset:{o}")
            v, o = addr(4, slot * SLOT)
            a(f"ds_read_b64_tr_b16 v[{rs+8*s+4}:{rs+8*s+5}], {v} offset:{o+s*2048}")
            a(f"ds_read_b64_tr_b16 v[{rs+8*s+6}:{rs+8*s+7}], {v} offset:{o+s*2048+512}")

    def mfma(rs, s):
        a(f"v_mfma_f32_32x32x16_bf16 v[64:79], v[{rs+8*s+4}:{rs+8*s+7}], v[{rs+8*s}:{rs+8*s+3}], v[64:79]")

    RS = (96, 128)
    PSLOT = 6 * SLOT
    for kb in range(NB):
        a(f"s_waitcnt vmcnt({vm_for(kb)})")
        a("s_barrier")
        reads(kb, RS[kb & 1])
        nk = kb - 1 + nslot
        if kb >= 1 and nk < NB:
            dma(nk)
            ops.extend([nk] * 4)
        if kb >= 1:
            for s in range(4):
                mfma(RS[(kb - 1) & 1], s)
        if kb == nslot:
            a("""
            v_lshlrev_b32 v41, 16, v41
            v_lshlrev_b32 v42, 16, v42
            v_lshlrev_b32 v43, 16, v43
            v_lshlrev_b32 v44, 16, v44
            v_add_f32 v42, 0x3727c5ac, v42
            v_cvt_pk_bf16_f32 v42, v42, v42
            v_lshlrev_b32 v42, 16, v42
            v_sqrt_f32 v42, v42
            s_nop 0
            v_cvt_pk_bf16_f32 v42, v42, v42
            v_lshlrev_b32 v42, 16, v42
            v_rcp_f32 v42, v42
            s_nop 0
            v_cvt_pk_bf16_f32 v42, v42, v42
            v_lshlrev_b32 v42, 16, v42
            v_mul_f32 v42, v43, v42
            v_cvt_pk_bf16_f32 v42, v42, v42
            v_lshlrev_b32 v42, 16, v42
            v_fma_f32 v44, -v41, v42, v44
            v_mul_f32 v42, 0xbfb8aa3b, v42
            v_mul_f32 v44, 0xbfb8aa3b, v44
            s_lshl_b32 s39, s28, 9
            """)
            a(f"s_add_u32 s39, s39, {PSLOT}")
            a("""
            v_lshl_add_u32 v45, v2, 2, s39
            ds_write_b32 v45, v42
            ds_write_b32 v45, v44 offset:256
            s_lshl_b32 s40, s34, 7
            s_add_u32 s39, s39, s40
            v_lshl_add_u32 v45, v15, 5, s39
            s_waitcnt lgkmcnt(0)
            ds_read_b128 v[160:163], v45
            ds_read_b128 v[164:167], v45 offset:16
            ds_read_b128 v[168:171], v45 offset:64
            ds_read_b128 v[172:175], v45 offset:80
            ds_read_b128 v[176:179], v45 offset:256
            ds_read_b128 v[180:183], v45 offset:272
            ds_read_b128 v[184:187], v45 offset:320
            ds_read_b128 v[188:191], v45 offset:336
            """)
        if kb < NB - 1:
            a("s_waitcnt lgkmcnt(0)")
    rs = RS[(NB - 1) & 1]
    for s in range(4):
        a(f"s_waitcnt lgkmcnt({9-3*s})")
        mfma(rs, s)
    a("""
    s_lshl_b32 s41, s5, 17
    s_lshl_b32 s42, s33, 16
    s_add_u32 s41, s41, s42
    s_lshl_b32 s42, s6, 7
    s_add_u32 s41, s41, s42
    s_lshl_b32 s42, s34, 6
    s_add_u32 s41, s41, s42
    v_lshlrev_b32 v46, 11, v14
    v_lshl_add_u32 v46, v15, 4, v46
    v_mov_b32 v48, 0xbfb8aa3b
    v_mov_b32 v49, 0xbfb8aa3b
    s_nop 7
    """)
    for half in range(2):
        b = 64 + 8 * half
        for i in range(0, 8, 2):
            a(f"v_pk_fma_f32 v[{b+i}:{b+i+1}], v[{b+i}:{b+i+1}], v[{160+8*half+i}:{160+8*half+i+1}], v[{176+8*half+i}:{176+8*half+i+1}]")
        for i in range(8):
            a(f"v_exp_f32 v{80+i}, v{b+i}")
        a("s_nop 0")
        for i in range(0, 8, 2):
            a(f"v_pk_fma_f32 v[{80+i}:{80+i+1}], v[{80+i}:{80+i+1}], v[48:49], v[48:49]")
        for i in range(8):
            a(f"v_rcp_f32 v{80+i}, v{80+i}")
        a("s_nop 0")
        for i in range(0, 8, 2):
            a(f"v_pk_mul_f32 v[{b+i}:{b+i+1}], v[{b+i}:{b+i+1}], v[{80+i}:{80+i+1}]")
        for i in range(0, 8, 2):
            a(f"v_cvt_pk_bf16_f32 v{88+4*half+i//2}, v{b+i}, v{b+i+1}")
        a(f"buffer_store_dwordx4 v[{88+4*half}:{88+4*half+3}], v46, s[24:27], s41 offen offset:{32*half}")
    a("L_end:")
    a("s_endpgm")
    return wrap(a.text(), 256, 256, nslot * SLOT, 192, 48,
                extra="  .amdhsa_float_denorm_mode_32 3\n")

if __name__ == "__main__":
    open(sys.argv[1], "w").write(gen())
```

```python
import sys
from common import *

SLOT = 16384
NB = 16

def gen(rot="full", pol="", D=3, nslot=8, stamp=False, spol="", xmap="4x8", pol0=None, npol0=0):
    if pol0 is None:
        pol0 = pol
    a = Asm()
    nst = [0]
    def st():
        if stamp:
            a(f"s_memtime s[{50+2*nst[0]}:{51+2*nst[0]}]")
            nst[0] += 1
    if stamp:
        a("s_memrealtime s[90:91]")
    st()
    a("""
    s_load_dwordx2 s[8:9], s[0:1], 0
    s_load_dwordx2 s[12:13], s[0:1], 8
    s_load_dwordx2 s[24:25], s[0:1], 48
    s_cmp_ge_u32 s2, 256
    s_cbranch_scc1 L_end
    v_lshrrev_b32 v1, 6, v0
    v_and_b32 v2, 63, v0
    s_and_b32 s3, s2, 7
    v_readfirstlane_b32 s28, v1
    s_lshr_b32 s4, s2, 3
    """)
    if xmap == "4x8":
        a("""
        s_lshr_b32 s40, s3, 1
        s_lshr_b32 s41, s4, 3
        s_lshl_b32 s5, s40, 2
        s_add_u32 s5, s5, s41
        s_and_b32 s42, s3, 1
        s_and_b32 s43, s4, 7
        s_lshl_b32 s6, s42, 3
        s_add_u32 s6, s6, s43
        """)
    else:
        a("""
        s_lshr_b32 s40, s3, 1
        s_lshr_b32 s41, s4, 3
        s_lshl_b32 s6, s40, 2
        s_add_u32 s6, s6, s41
        s_and_b32 s42, s3, 1
        s_and_b32 s43, s4, 7
        s_lshl_b32 s5, s42, 3
        s_add_u32 s5, s5, s43
        """)
    a("""
    v_lshrrev_b32 v5, 4, v2
    s_cmp_ge_u32 s28, 4
    s_cbranch_scc1 L_cons
    """)
    rots = {
        "none": "s_mov_b32 s7, 0",
        "full": "s_lshl_b32 s7, s43, 1\ns_lshl_b32 s44, s41, 2\ns_add_u32 s7, s7, s44\ns_add_u32 s7, s7, s40\ns_add_u32 s7, s7, s42",
        "xcd": "s_lshl_b32 s7, s40, 2\ns_lshl_b32 s44, s42, 1\ns_add_u32 s7, s7, s44",
    }
    a("s_lshl_b32 s45, s28, 3\ns_add_u32 s45, s45, 16\ns_load_dwordx2 s[16:17], s[0:1], s45")
    a(rots[rot.replace("first", "full")])
    a(f"""
    s_and_b32 s7, s7, 15
    s_mov_b32 s10, 0x200000
    s_mov_b32 s11, 0x20000
    s_mov_b32 s14, 0x600000
    s_mov_b32 s15, 0x20000
    v_lshrrev_b32 v3, 3, v2
    v_and_b32 v4, 7, v2
    s_lshl_b32 s29, s5, 17
    s_lshl_b32 s30, s28, 15
    s_add_u32 s29, s29, s30
    v_xor_b32 v6, v4, v5
    v_lshlrev_b32 v6, 4, v6
    v_lshl_add_u32 v6, v3, 11, v6
    v_add_u32 v10, s29, v6
    v_xor_b32 v11, 64, v10
    v_add_u32 v11, 15360, v11
    v_and_b32 v7, 1, v5
    v_lshlrev_b32 v7, 2, v7
    v_xor_b32 v7, v4, v7
    v_lshlrev_b32 v7, 4, v7
    v_lshl_add_u32 v7, v3, 11, v7
    s_lshl_b32 s31, s6, 7
    s_add_u32 s31, s31, s30
    s_add_u32 s31, s31, 0x200000
    v_add_u32 v12, s31, v7
    v_add_u32 v13, 15360, v12
    s_lshl_b32 s32, s28, 11
    s_lshl_b32 s36, s7, 7
    s_mov_b32 s33, s36
    s_mov_b32 s34, 0
    s_movk_i32 s35, 0x2000
    s_mov_b32 s38, 0x1ffff
    v_and_b32 v8, 31, v2
    s_lshl_b32 s45, s6, 7
    v_lshl_add_u32 v8, v8, 2, s45
    s_lshl_b32 s45, s28, 8
    s_add_u32 m0, s45, {nslot*SLOT + 2048}
    s_waitcnt lgkmcnt(0)
    global_load_lds_dword v8, s[16:17]
    s_mov_b32 m0, s32
    s_nop 0
    """)
    st()
    assert nslot == 8
    def dma(p):
        a(f"""
        buffer_load_dwordx4 v10, s[8:11], s36 offen {p} lds
        buffer_load_dwordx4 v11, s[8:11], s36 offen offset:1024 {p} lds
        s_add_u32 m0, s32, s35
        s_lshl_b32 s37, s36, 10
        buffer_load_dwordx4 v12, s[12:15], s37 offen {p} lds
        buffer_load_dwordx4 v13, s[12:15], s37 offen offset:1024 {p} lds
        s_add_u32 s32, s32, 0x4000
        s_and_b32 s32, s32, s38
        s_mov_b32 m0, s32
        """)
        if rot == "first":
            a("""
            s_mov_b32 s36, s34
            s_cmp_ge_u32 s34, s33
            s_cselect_b32 s39, 128, 0
            s_add_u32 s36, s36, s39
            s_addk_i32 s34, 128
            """)
        else:
            a("s_addk_i32 s36, 128\ns_and_b32 s36, s36, 0x7ff")
    for j in range(D):
        dma(pol0 if j < npol0 else pol)
    st()
    a(f"s_movk_i32 s44, {NB-D}")
    a("L_ld:")
    dma(pol)
    a(f"""
    s_sub_u32 s44, s44, 1
    s_waitcnt vmcnt({4*D})
    s_barrier
    s_cmp_lg_u32 s44, 0
    s_cbranch_scc1 L_ld
    """)
    for j in range(D):
        a(f"s_waitcnt vmcnt({4*(D-1-j)})")
        a("s_barrier")
    if stamp:
        st()
        a("s_branch L_stamp")
    else:
        a("s_endpgm")
    nst[0] = 1 if stamp else 0
    a("L_cons:")
    a("""
    s_bfe_u32 s33, s28, 0x10001
    s_and_b32 s34, s28, 1
    s_lshl_b32 s38, s6, 7
    v_lshlrev_b32 v40, 1, v2
    v_add_u32 v40, 0x20800, v40
    v_and_b32 v14, 31, v2
    v_lshrrev_b32 v15, 5, v2
    v_bfe_u32 v16, v2, 1, 3
    v_xor_b32 v16, v16, v15
    v_lshlrev_b32 v16, 4, v16
    v_lshl_add_u32 v16, v14, 7, v16
    s_lshl_b32 s35, s33, 12
    v_add_u32 v20, s35, v16
    v_xor_b32 v21, 32, v20
    v_xor_b32 v22, 64, v20
    v_xor_b32 v23, 96, v20
    v_and_b32 v19, 1, v2
    v_bfe_u32 v18, v2, 2, 2
    v_lshlrev_b32 v19, 4, v19
    v_bfe_u32 v17, v2, 1, 1
    v_lshl_add_u32 v19, v17, 3, v19
    v_and_b32 v17, 1, v5
    v_lshl_add_u32 v19, v17, 5, v19
    v_lshrrev_b32 v17, 1, v18
    v_xor_b32 v17, s34, v17
    v_lshl_add_u32 v19, v17, 6, v19
    v_lshl_add_u32 v19, v18, 7, v19
    v_lshl_add_u32 v24, v15, 10, v19
    v_add_u32 v24, 8192, v24
    s_mov_b32 s26, 0x200000
    s_mov_b32 s27, 0x20000
    s_lshl_b32 s41, s5, 17
    s_lshl_b32 s42, s33, 16
    s_add_u32 s41, s41, s42
    s_add_u32 s41, s41, s38
    s_lshl_b32 s42, s34, 6
    s_add_u32 s41, s41, s42
    v_lshlrev_b32 v46, 11, v14
    v_lshl_add_u32 v46, v15, 4, v46
    v_mov_b32 v48, 0xbfb8aa3b
    v_mov_b32 v49, v48
    s_waitcnt lgkmcnt(0)
    """)
    for i in range(16):
        a(f"v_mov_b32 v{64+i}, 0")
    st()
    a("s_mov_b32 s44, 0")
    a("L_cl:")
    for u in range(4):
        a("s_barrier")
        if stamp and u == 0:
            a("s_memtime s[96:97]\ns_waitcnt lgkmcnt(0)\ns_mov_b32 m0, s44\ns_nop 0\ns_movreld_b32 s54, s96")
        for s in range(4):
            a(f"ds_read_b128 v[{96+8*s}:{96+8*s+3}], v{20+s} offset:{u*SLOT}")
            a(f"ds_read_b64_tr_b16 v[{96+8*s+4}:{96+8*s+5}], v24 offset:{u*SLOT+s*2048}")
            a(f"ds_read_b64_tr_b16 v[{96+8*s+6}:{96+8*s+7}], v24 offset:{u*SLOT+s*2048+512}")
        if u == 3:
            for i in range(5):
                a(f"v_xor_b32 v{20+i}, 0x10000, v{20+i}")
        for s in range(4):
            a(f"s_waitcnt lgkmcnt({9-3*s})")
            a(f"v_mfma_f32_32x32x16_bf16 v[64:79], v[{96+8*s+4}:{96+8*s+7}], v[{96+8*s}:{96+8*s+3}], v[64:79]")
    a("""
    s_add_u32 s44, s44, 2
    s_cmp_eq_u32 s44, 4
    s_cbranch_scc1 L_par
    L_back:
    s_cmp_lg_u32 s44, 8
    s_cbranch_scc1 L_cl
    """)
    if stamp:
        nst[0] = 6
    st()
    a("s_nop 7")
    for half in range(2):
        b = 64 + 8 * half
        for i in range(0, 8, 2):
            a(f"v_pk_fma_f32 v[{b+i}:{b+i+1}], v[{b+i}:{b+i+1}], v[{128+8*half+i}:{128+8*half+i+1}], v[{144+8*half+i}:{144+8*half+i+1}]")
        for i in range(8):
            a(f"v_exp_f32 v{80+i}, v{b+i}")
        for i in range(0, 8, 2):
            a(f"v_pk_fma_f32 v[{80+i}:{80+i+1}], v[{80+i}:{80+i+1}], v[48:49], v[48:49]")
        for i in range(8):
            a(f"v_rcp_f32 v{80+i}, v{80+i}")
        for i in range(0, 8, 2):
            a(f"v_pk_mul_f32 v[{b+i}:{b+i+1}], v[{b+i}:{b+i+1}], v[{80+i}:{80+i+1}]")
        for i in range(0, 8, 2):
            a(f"v_cvt_pk_bf16_f32 v{88+4*half+i//2}, v{b+i}, v{b+i+1}")
        a(f"buffer_store_dwordx4 v[{88+4*half}:{88+4*half+3}], v46, s[24:27], s41 offen offset:{32*half} {spol}")
    if stamp:
        st()
        a("s_waitcnt vmcnt(0)")
        st()
        a("L_stamp:")
        a("""
        s_memrealtime s[92:93]
        s_load_dwordx2 s[46:47], s[0:1], 64
        s_getreg_b32 s94, hwreg(HW_REG_XCC_ID)
        s_waitcnt lgkmcnt(0)
        s_lshl_b32 s3, s2, 3
        s_add_u32 s3, s3, s28
        s_lshl_b32 s3, s3, 7
        v_mov_b32 v1, s3
        """)
        for i in range(nst[0]):
            a(f"s_sub_u32 s4, s{50+2*i}, s50")
            a(f"v_mov_b32 v2, s4")
            a(f"global_store_dword v1, v2, s[46:47] offset:{4*i}")
        for i, v in enumerate(("s90", "s92", "s94")):
            a(f"v_mov_b32 v2, {v}")
            a(f"global_store_dword v1, v2, s[46:47] offset:{4*(24+i)}")
    a("L_end:")
    a("s_endpgm")
    a("L_par:")
    a(f"""
    ds_read_u16 v41, v40
    ds_read_u16 v42, v40 offset:256
    ds_read_u16 v43, v40 offset:512
    ds_read_u16 v44, v40 offset:768
    s_waitcnt lgkmcnt(0)
    v_lshlrev_b32 v41, 16, v41
    v_lshlrev_b32 v42, 16, v42
    v_lshlrev_b32 v43, 16, v43
    v_lshlrev_b32 v44, 16, v44
    v_add_f32 v42, 0x3727c5ac, v42
    v_cvt_pk_bf16_f32 v42, v42, v42
    v_lshlrev_b32 v42, 16, v42
    v_sqrt_f32 v42, v42
    s_lshl_b32 s39, s28, 9
    v_cvt_pk_bf16_f32 v42, v42, v42
    v_lshlrev_b32 v42, 16, v42
    v_rcp_f32 v42, v42
    s_add_u32 s39, s39, {nslot*SLOT - 2048}
    v_cvt_pk_bf16_f32 v42, v42, v42
    v_lshlrev_b32 v42, 16, v42
    v_mul_f32 v42, v43, v42
    v_cvt_pk_bf16_f32 v42, v42, v42
    v_lshlrev_b32 v42, 16, v42
    v_fma_f32 v44, -v41, v42, v44
    v_mul_f32 v42, v48, v42
    v_mul_f32 v44, v48, v44
    v_lshl_add_u32 v45, v2, 2, s39
    ds_write_b32 v45, v42
    ds_write_b32 v45, v44 offset:256
    s_lshl_b32 s40, s34, 7
    s_add_u32 s39, s39, s40
    v_lshl_add_u32 v45, v15, 5, s39
    s_waitcnt lgkmcnt(0)
    ds_read_b128 v[128:131], v45
    ds_read_b128 v[132:135], v45 offset:16
    ds_read_b128 v[136:139], v45 offset:64
    ds_read_b128 v[140:143], v45 offset:80
    ds_read_b128 v[144:147], v45 offset:256
    ds_read_b128 v[148:151], v45 offset:272
    ds_read_b128 v[152:155], v45 offset:320
    ds_read_b128 v[156:159], v45 offset:336
    s_branch L_back
    """)
    t = wrap(a.text(), 256, 512, nslot * SLOT + 3072, 160, 100 if stamp else 48,
             extra="  .amdhsa_float_denorm_mode_32 3\n")
    return t.replace(".p2align 8\n.type", ".p2align 12\n.type")

if __name__ == "__main__":
    out = sys.argv[1]
    kw = dict(x.split("=") for x in sys.argv[2:])
    for k in ("D", "stamp", "npol0"):
        if k in kw:
            kw[k] = int(kw[k])
    for k in ("pol", "spol", "pol0"):
        if k in kw:
            kw[k] = kw[k].replace("+", " ")
    open(out, "w").write(gen(**kw))
```

```python
import sys
from common import *

SLOT = 16384
NB = 16

def gen(rot="full", pol="", D=3, nslot=8, stamp=False, spol="", xmap="4x8", pol0=None, npol0=0, probe=None, pwg=100):
    if pol0 is None:
        pol0 = pol
    a = Asm()
    nst = [0]
    def st():
        if stamp:
            a(f"s_memtime s[{50+2*nst[0]}:{51+2*nst[0]}]")
            nst[0] += 1
    def pr(k):
        if probe == k:
            a("s_memrealtime s[92:93]\ns_waitcnt lgkmcnt(0)")
    if stamp or probe is not None:
        a("s_memrealtime s[90:91]")
    if probe == 0:
        a("s_memrealtime s[92:93]")
    st()
    a("""
    s_load_dwordx2 s[8:9], s[0:1], 0
    s_load_dwordx2 s[12:13], s[0:1], 8
    s_load_dwordx2 s[24:25], s[0:1], 48
    s_cmp_ge_u32 s2, 256
    s_cbranch_scc1 L_end
    v_lshrrev_b32 v1, 6, v0
    v_and_b32 v2, 63, v0
    s_and_b32 s3, s2, 7
    v_readfirstlane_b32 s28, v1
    s_lshr_b32 s4, s2, 3
    """)
    if xmap == "4x8":
        a("""
        s_lshr_b32 s40, s3, 1
        s_lshr_b32 s41, s4, 3
        s_lshl_b32 s5, s40, 2
        s_add_u32 s5, s5, s41
        s_and_b32 s42, s3, 1
        s_and_b32 s43, s4, 7
        s_lshl_b32 s6, s42, 3
        s_add_u32 s6, s6, s43
        """)
    else:
        a("""
        s_lshr_b32 s40, s3, 1
        s_lshr_b32 s41, s4, 3
        s_lshl_b32 s6, s40, 2
        s_add_u32 s6, s6, s41
        s_and_b32 s42, s3, 1
        s_and_b32 s43, s4, 7
        s_lshl_b32 s5, s42, 3
        s_add_u32 s5, s5, s43
        """)
    a("""
    v_lshrrev_b32 v5, 4, v2
    s_cmp_ge_u32 s28, 4
    s_cbranch_scc1 L_cons
    """)
    rots = {
        "none": "s_mov_b32 s7, 0",
        "full": "s_lshl_b32 s7, s43, 1\ns_lshl_b32 s44, s41, 2\ns_add_u32 s7, s7, s44\ns_add_u32 s7, s7, s40\ns_add_u32 s7, s7, s42",
        "xcd": "s_lshl_b32 s7, s40, 2\ns_lshl_b32 s44, s42, 1\ns_add_u32 s7, s7, s44",
    }
    a("s_lshl_b32 s45, s28, 3\ns_add_u32 s45, s45, 16\ns_load_dwordx2 s[16:17], s[0:1], s45")
    a(rots[rot.replace("first", "full")])
    a(f"""
    s_and_b32 s7, s7, 15
    s_mov_b32 s10, 0x200000
    s_mov_b32 s11, 0x20000
    s_mov_b32 s14, 0x600000
    s_mov_b32 s15, 0x20000
    v_lshrrev_b32 v3, 3, v2
    v_and_b32 v4, 7, v2
    s_lshl_b32 s29, s5, 17
    s_lshl_b32 s30, s28, 15
    s_add_u32 s29, s29, s30
    v_xor_b32 v6, v4, v5
    v_lshlrev_b32 v6, 4, v6
    v_lshl_add_u32 v6, v3, 11, v6
    v_add_u32 v10, s29, v6
    v_xor_b32 v11, 64, v10
    v_add_u32 v11, 15360, v11
    v_and_b32 v7, 1, v5
    v_lshlrev_b32 v7, 2, v7
    v_xor_b32 v7, v4, v7
    v_lshlrev_b32 v7, 4, v7
    v_lshl_add_u32 v7, v3, 11, v7
    s_lshl_b32 s31, s6, 7
    s_add_u32 s31, s31, s30
    s_add_u32 s31, s31, 0x200000
    v_add_u32 v12, s31, v7
    v_add_u32 v13, 15360, v12
    s_lshl_b32 s32, s28, 11
    s_lshl_b32 s36, s7, 7
    s_mov_b32 s33, s36
    s_mov_b32 s34, 0
    s_movk_i32 s35, 0x2000
    s_mov_b32 s38, 0x1ffff
    v_and_b32 v8, 31, v2
    s_lshl_b32 s45, s6, 7
    v_lshl_add_u32 v8, v8, 2, s45
    s_lshl_b32 s45, s28, 8
    s_add_u32 m0, s45, {nslot*SLOT + 2048}
    s_waitcnt lgkmcnt(0)
    global_load_lds_dword v8, s[16:17]
    s_mov_b32 m0, s32
    s_nop 0
    """)
    st()
    assert nslot == 8
    def dma(p):
        a(f"""
        buffer_load_dwordx4 v10, s[8:11], s36 offen {p} lds
        buffer_load_dwordx4 v11, s[8:11], s36 offen offset:1024 {p} lds
        s_add_u32 m0, s32, s35
        s_lshl_b32 s37, s36, 10
        buffer_load_dwordx4 v12, s[12:15], s37 offen {p} lds
        buffer_load_dwordx4 v13, s[12:15], s37 offen offset:1024 {p} lds
        s_add_u32 s32, s32, 0x4000
        s_and_b32 s32, s32, s38
        s_mov_b32 m0, s32
        """)
        if rot == "first":
            a("""
            s_mov_b32 s36, s34
            s_cmp_ge_u32 s34, s33
            s_cselect_b32 s39, 128, 0
            s_add_u32 s36, s36, s39
            s_addk_i32 s34, 128
            """)
        else:
            a("s_addk_i32 s36, 128\ns_and_b32 s36, s36, 0x7ff")
    for j in range(D):
        dma(pol0 if j < npol0 else pol)
    st()
    a(f"s_movk_i32 s44, {NB-D}")
    a("L_ld:")
    dma(pol)
    a(f"""
    s_sub_u32 s44, s44, 1
    s_waitcnt vmcnt({4*D})
    s_barrier
    s_cmp_lg_u32 s44, 0
    s_cbranch_scc1 L_ld
    """)
    for j in range(D):
        a(f"s_waitcnt vmcnt({4*(D-1-j)})")
        a("s_barrier")
    if stamp:
        st()
        a("s_branch L_stamp")
    else:
        a("s_endpgm")
    nst[0] = 1 if stamp else 0
    a("L_cons:")
    a("""
    s_bfe_u32 s33, s28, 0x10001
    s_and_b32 s34, s28, 1
    s_lshl_b32 s38, s6, 7
    v_lshlrev_b32 v40, 1, v2
    v_add_u32 v40, 0x20800, v40
    v_and_b32 v14, 31, v2
    v_lshrrev_b32 v15, 5, v2
    v_bfe_u32 v16, v2, 1, 3
    v_xor_b32 v16, v16, v15
    v_lshlrev_b32 v16, 4, v16
    v_lshl_add_u32 v16, v14, 7, v16
    s_lshl_b32 s35, s33, 12
    v_add_u32 v20, s35, v16
    v_xor_b32 v21, 32, v20
    v_xor_b32 v22, 64, v20
    v_xor_b32 v23, 96, v20
    v_and_b32 v19, 1, v2
    v_bfe_u32 v18, v2, 2, 2
    v_lshlrev_b32 v19, 4, v19
    v_bfe_u32 v17, v2, 1, 1
    v_lshl_add_u32 v19, v17, 3, v19
    v_and_b32 v17, 1, v5
    v_lshl_add_u32 v19, v17, 5, v19
    v_lshrrev_b32 v17, 1, v18
    v_xor_b32 v17, s34, v17
    v_lshl_add_u32 v19, v17, 6, v19
    v_lshl_add_u32 v19, v18, 7, v19
    v_lshl_add_u32 v24, v15, 10, v19
    v_add_u32 v24, 8192, v24
    s_mov_b32 s26, 0x200000
    s_mov_b32 s27, 0x20000
    s_lshl_b32 s41, s5, 17
    s_lshl_b32 s42, s33, 16
    s_add_u32 s41, s41, s42
    s_add_u32 s41, s41, s38
    s_lshl_b32 s42, s34, 6
    s_add_u32 s41, s41, s42
    v_lshlrev_b32 v46, 11, v14
    v_lshl_add_u32 v46, v15, 4, v46
    v_mov_b32 v48, 0xbfb8aa3b
    v_mov_b32 v49, v48
    s_waitcnt lgkmcnt(0)
    """)
    pr(1)
    for i in range(16):
        a(f"v_mov_b32 v{64+i}, 0")
    st()
    a("s_mov_b32 s44, 0")
    a("L_cl:")
    for u in range(4):
        a("s_barrier")
        if probe in (2, 6, 7) and u == 0:
            a(f"s_cmp_lg_u32 s44, {dict([(2,0),(6,2),(7,4)])[probe]}\ns_cbranch_scc1 L_np\ns_memrealtime s[92:93]\ns_waitcnt lgkmcnt(0)\nL_np:")
        if stamp and u == 0:
            a("s_memtime s[96:97]\ns_waitcnt lgkmcnt(0)\ns_mov_b32 m0, s44\ns_nop 0\ns_movreld_b32 s54, s96")
        for s in range(4):
            a(f"ds_read_b128 v[{96+8*s}:{96+8*s+3}], v{20+s} offset:{u*SLOT}")
            a(f"ds_read_b64_tr_b16 v[{96+8*s+4}:{96+8*s+5}], v24 offset:{u*SLOT+s*2048}")
            a(f"ds_read_b64_tr_b16 v[{96+8*s+6}:{96+8*s+7}], v24 offset:{u*SLOT+s*2048+512}")
        if u == 3:
            for i in range(5):
                a(f"v_xor_b32 v{20+i}, 0x10000, v{20+i}")
        for s in range(4):
            a(f"s_waitcnt lgkmcnt({9-3*s})")
            a(f"v_mfma_f32_32x32x16_bf16 v[64:79], v[{96+8*s+4}:{96+8*s+7}], v[{96+8*s}:{96+8*s+3}], v[64:79]")
    a("""
    s_add_u32 s44, s44, 2
    s_cmp_eq_u32 s44, 4
    s_cbranch_scc1 L_par
    L_back:
    s_cmp_lg_u32 s44, 8
    s_cbranch_scc1 L_cl
    """)
    if stamp:
        nst[0] = 6
    st()
    pr(3)
    a("s_nop 7")
    for half in range(2):
        b = 64 + 8 * half
        for i in range(0, 8, 2):
            a(f"v_pk_fma_f32 v[{b+i}:{b+i+1}], v[{b+i}:{b+i+1}], v[{128+8*half+i}:{128+8*half+i+1}], v[{144+8*half+i}:{144+8*half+i+1}]")
        for i in range(8):
            a(f"v_exp_f32 v{80+i}, v{b+i}")
        for i in range(0, 8, 2):
            a(f"v_pk_fma_f32 v[{80+i}:{80+i+1}], v[{80+i}:{80+i+1}], v[48:49], v[48:49]")
        for i in range(8):
            a(f"v_rcp_f32 v{80+i}, v{80+i}")
        for i in range(0, 8, 2):
            a(f"v_pk_mul_f32 v[{b+i}:{b+i+1}], v[{b+i}:{b+i+1}], v[{80+i}:{80+i+1}]")
        for i in range(0, 8, 2):
            a(f"v_cvt_pk_bf16_f32 v{88+4*half+i//2}, v{b+i}, v{b+i+1}")
        a(f"buffer_store_dwordx4 v[{88+4*half}:{88+4*half+3}], v46, s[24:27], s41 offen offset:{32*half} {spol}")
    if probe is not None:
        pr(4)
        a("s_waitcnt vmcnt(0)")
        pr(5)
        a(f"""
        s_cmp_lg_u32 s2, {pwg}
        s_cbranch_scc1 L_end
        s_cmp_lg_u32 s28, 4
        s_cbranch_scc1 L_end
        s_sub_u32 s92, s92, s90
        s_lshl_b32 s92, s92, 4
        s_add_u32 s92, s92, 2000
        s_min_u32 s92, s92, 100000
        L_spin:
        s_memrealtime s[94:95]
        s_waitcnt lgkmcnt(0)
        s_sub_u32 s94, s94, s90
        s_cmp_lt_u32 s94, s92
        s_cbranch_scc1 L_spin
        """)
    if stamp:
        st()
        a("s_waitcnt vmcnt(0)")
        st()
        a("L_stamp:")
        a("""
        s_memrealtime s[92:93]
        s_load_dwordx2 s[46:47], s[0:1], 64
        s_getreg_b32 s94, hwreg(HW_REG_XCC_ID)
        s_waitcnt lgkmcnt(0)
        s_lshl_b32 s3, s2, 3
        s_add_u32 s3, s3, s28
        s_lshl_b32 s3, s3, 7
        v_mov_b32 v1, s3
        """)
        for i in range(nst[0]):
            a(f"s_sub_u32 s4, s{50+2*i}, s50")
            a(f"v_mov_b32 v2, s4")
            a(f"global_store_dword v1, v2, s[46:47] offset:{4*i}")
        for i, v in enumerate(("s90", "s92", "s94")):
            a(f"v_mov_b32 v2, {v}")
            a(f"global_store_dword v1, v2, s[46:47] offset:{4*(24+i)}")
    a("L_end:")
    a("s_endpgm")
    a("L_par:")
    a(f"""
    ds_read_u16 v41, v40
    ds_read_u16 v42, v40 offset:256
    ds_read_u16 v43, v40 offset:512
    ds_read_u16 v44, v40 offset:768
    s_waitcnt lgkmcnt(0)
    v_lshlrev_b32 v41, 16, v41
    v_lshlrev_b32 v42, 16, v42
    v_lshlrev_b32 v43, 16, v43
    v_lshlrev_b32 v44, 16, v44
    v_add_f32 v42, 0x3727c5ac, v42
    v_cvt_pk_bf16_f32 v42, v42, v42
    v_lshlrev_b32 v42, 16, v42
    v_sqrt_f32 v42, v42
    s_lshl_b32 s39, s28, 9
    v_cvt_pk_bf16_f32 v42, v42, v42
    v_lshlrev_b32 v42, 16, v42
    v_rcp_f32 v42, v42
    s_add_u32 s39, s39, {nslot*SLOT - 2048}
    v_cvt_pk_bf16_f32 v42, v42, v42
    v_lshlrev_b32 v42, 16, v42
    v_mul_f32 v42, v43, v42
    v_cvt_pk_bf16_f32 v42, v42, v42
    v_lshlrev_b32 v42, 16, v42
    v_fma_f32 v44, -v41, v42, v44
    v_mul_f32 v42, v48, v42
    v_mul_f32 v44, v48, v44
    v_lshl_add_u32 v45, v2, 2, s39
    ds_write_b32 v45, v42
    ds_write_b32 v45, v44 offset:256
    s_lshl_b32 s40, s34, 7
    s_add_u32 s39, s39, s40
    v_lshl_add_u32 v45, v15, 5, s39
    s_waitcnt lgkmcnt(0)
    ds_read_b128 v[128:131], v45
    ds_read_b128 v[132:135], v45 offset:16
    ds_read_b128 v[136:139], v45 offset:64
    ds_read_b128 v[140:143], v45 offset:80
    ds_read_b128 v[144:147], v45 offset:256
    ds_read_b128 v[148:151], v45 offset:272
    ds_read_b128 v[152:155], v45 offset:320
    ds_read_b128 v[156:159], v45 offset:336
    s_branch L_back
    """)
    t = wrap(a.text(), 256, 512, nslot * SLOT + 3072, 160, 100 if (stamp or probe is not None) else 48,
             extra="  .amdhsa_float_denorm_mode_32 3\n")
    return t.replace(".p2align 8\n.type", ".p2align 12\n.type")

if __name__ == "__main__":
    out = sys.argv[1]
    kw = dict(x.split("=") for x in sys.argv[2:])
    for k in ("D", "stamp", "npol0", "probe", "pwg"):
        if k in kw:
            kw[k] = int(kw[k])
    for k in ("pol", "spol", "pol0"):
        if k in kw:
            kw[k] = kw[k].replace("+", " ")
    open(out, "w").write(gen(**kw))
```

```python
import sys
from common import *

SLOT = 16384
NB = 16
PAR = 8 * SLOT

def gen(rot="first", D=3, stamp=0, spol="", lag=4, pf3=1, skipk=2, probe=None, pwg=100, prio=0, dist=4, exp=0):
    a = Asm()
    nst = [0]
    def st(light=False):
        if stamp:
            if stamp == 1 or light:
                a(f"s_memtime s[{50+2*nst[0]}:{51+2*nst[0]}]")
            nst[0] += 1
    if stamp or probe is not None:
        a("s_memrealtime s[90:91]")
    if probe == 0:
        a("s_memrealtime s[92:93]")
    st(True)
    a("""
    s_load_dwordx2 s[8:9], s[0:1], 0
    s_load_dwordx2 s[12:13], s[0:1], 8
    s_load_dwordx8 s[16:23], s[0:1], 16
    s_load_dwordx2 s[24:25], s[0:1], 48
    s_cmp_ge_u32 s2, 256
    s_cbranch_scc1 L_end
    v_lshrrev_b32 v1, 6, v0
    v_and_b32 v2, 63, v0
    s_lshr_b32 s4, s2, 3
    v_readfirstlane_b32 s28, v1
    s_bfe_u32 s40, s2, 0x20001
    s_lshr_b32 s41, s2, 6
    s_lshl2_add_u32 s5, s40, s41
    s_and_b32 s42, s2, 1
    s_and_b32 s43, s4, 7
    s_lshl3_add_u32 s6, s42, s43
    v_lshrrev_b32 v5, 4, v2
    s_lshl_b32 s38, s6, 7
    v_mov_b32 v48, 0xbfb8aa3b
    s_cmp_ge_u32 s28, 4
    s_cbranch_scc1 L_cons
    """)
    a(f"""
    s_lshl1_add_u32 s7, s41, s43
    s_lshl1_add_u32 s7, s7, s40
    s_add_u32 s7, s7, s42
    s_and_b32 s7, s7, 15
    s_mov_b32 s10, 0x200000
    s_mov_b32 s11, 0x20000
    s_mov_b32 s14, 0x600000
    s_mov_b32 s15, s11
    v_lshrrev_b32 v3, 3, v2
    v_and_b32 v4, 7, v2
    s_lshl_b32 s29, s5, 17
    s_lshl_b32 s30, s28, 15
    s_add_u32 s29, s29, s30
    v_xor_b32 v6, v4, v5
    v_lshlrev_b32 v6, 4, v6
    v_lshl_add_u32 v6, v3, 11, v6
    v_add_u32 v10, s29, v6
    v_xor_b32 v11, 64, v10
    v_add_u32 v11, 15360, v11
    v_and_b32 v7, 1, v5
    v_lshlrev_b32 v7, 2, v7
    v_xor_b32 v7, v4, v7
    v_lshlrev_b32 v7, 4, v7
    v_lshl_add_u32 v7, v3, 11, v7
    s_add_u32 s31, s38, s30
    s_add_u32 s31, s31, s10
    v_add_u32 v12, s31, v7
    v_add_u32 v13, 15360, v12
    s_lshl_b32 s32, s28, 11
    s_lshl_b32 s33, s7, 7
    s_movk_i32 s35, 0x2000
    s_mov_b32 s45, 0x1ffff
    v_lshl_add_u32 v40, v2, 1, s38
    s_mov_b32 m0, s32
    """)
    def nextk():
        a("""
        s_cmp_ge_u32 s34, s33
        s_cselect_b32 s39, 128, 0
        s_add_u32 s36, s34, s39
        s_addk_i32 s34, 128
        """)
    a("s_mov_b32 s34, 0")
    if rot == "first":
        a("s_mov_b32 s36, s33")
    elif rot == "second":
        nextk()
    a("""
    s_cmp_lg_u32 s28, 0
    s_waitcnt lgkmcnt(0)
    s_cbranch_scc1 L_nop
    global_load_ushort v41, v40, s[16:17]
    global_load_ushort v42, v40, s[18:19]
    global_load_ushort v43, v40, s[20:21]
    global_load_ushort v44, v40, s[22:23]
    L_nop:
    """)
    st()
    def dma():
        a(f"""
        buffer_load_dwordx4 v10, s[8:11], s36 offen lds
        buffer_load_dwordx4 v11, s[8:11], s36 offen offset:1024 lds
        s_add_u32 m0, s32, s35
        s_lshl_b32 s37, s36, 10
        buffer_load_dwordx4 v12, s[12:15], s37 offen lds
        buffer_load_dwordx4 v13, s[12:15], s37 offen offset:1024 lds
        s_addk_i32 s32, 0x4000
        s_and_b32 s32, s32, s45
        s_mov_b32 m0, s32
        """)
    for j in range(D):
        dma()
        if rot == "second" and j == 0:
            a("s_mov_b32 s36, s33")
        else:
            nextk()
    st()
    if pf3:
        a(f"""
        s_lshl_b32 s31, s42, 10
        s_lshl_b32 s46, s4, 12
        s_add_u32 s31, s31, s46
        s_lshr_b32 s46, s28, 1
        s_lshl_b32 s46, s46, 11
        s_add_u32 s31, s31, s46
        s_and_b32 s46, s28, 1
        s_lshl_b32 s46, s46, 6
        s_add_u32 s31, s31, s46
        s_add_u32 s31, s31, {0x200000 + 384}
        s_add_u32 s46, s12, s31
        s_addc_u32 s47, s13, 0
        s_mov_b32 s31, {(D - 1 + dist) * 131072}
        """)
        for kb in range(skipk, D - 1 + dist):
            a(f"s_load_dword s49, s[46:47], {kb*131072}")
    a(f"""
    s_cmp_lg_u32 s28, 0
    s_cbranch_scc1 L_ld0
    s_waitcnt vmcnt({4*D})
    v_lshlrev_b32 v42, 16, v42
    v_add_f32 v42, 0x3727c5ac, v42
    v_cvt_pk_bf16_f32 v42, v42, v42
    v_lshlrev_b32 v42, 16, v42
    v_sqrt_f32 v42, v42
    v_lshlrev_b32 v41, 16, v41
    v_cvt_pk_bf16_f32 v42, v42, v42
    v_lshlrev_b32 v42, 16, v42
    v_rcp_f32 v42, v42
    v_lshlrev_b32 v43, 16, v43
    v_cvt_pk_bf16_f32 v42, v42, v42
    v_lshlrev_b32 v42, 16, v42
    v_mul_f32 v42, v43, v42
    v_cvt_pk_bf16_f32 v42, v42, v42
    v_lshlrev_b32 v44, 16, v44
    v_lshlrev_b32 v42, 16, v42
    v_fma_f32 v44, -v41, v42, v44
    v_mul_f32 v42, v48, v42
    v_mul_f32 v44, v48, v44
    v_lshlrev_b32 v45, 2, v2
    v_add_u32 v45, {PAR}, v45
    ds_write_b32 v45, v42
    ds_write_b32 v45, v44 offset:256
    s_waitcnt lgkmcnt(0)
    L_ld0:
    s_movk_i32 s44, {NB-D}
    L_ld:
    """)
    if pf3:
        a("s_load_dword s49, s[46:47], s31")
    dma()
    nextk()
    if pf3:
        a("s_add_u32 s31, s31, s11\ns_min_u32 s31, s31, 0x1e0000")
    a(f"""
    s_sub_u32 s44, s44, 1
    s_cmp_lg_u32 s44, 0
    s_waitcnt vmcnt({4*D})
    s_barrier
    s_cbranch_scc1 L_ld
    """)
    for j in range(D):
        a(f"s_waitcnt vmcnt({4*(D-1-j)})")
        a("s_barrier")
    if stamp:
        st(True)
        a("s_branch L_stamp")
    else:
        a("s_endpgm")
    nst[0] = 1 if stamp else 0
    a("L_cons:")
    if prio:
        a(f"s_setprio {prio}")
    a("s_bfe_u32 s33, s28, 0x10001\ns_and_b32 s34, s28, 1")
    a(f"""
    v_and_b32 v14, 31, v2
    v_lshrrev_b32 v15, 5, v2
    v_bfe_u32 v16, v2, 1, 3
    v_xor_b32 v16, v16, v15
    v_lshlrev_b32 v16, 4, v16
    v_lshl_add_u32 v16, v14, 7, v16
    s_lshl_b32 s35, s33, 12
    v_add_u32 v20, s35, v16
    v_xor_b32 v21, 32, v20
    v_xor_b32 v22, 64, v20
    v_xor_b32 v23, 96, v20
    v_and_b32 v19, 1, v2
    v_bfe_u32 v18, v2, 2, 2
    v_lshlrev_b32 v19, 4, v19
    v_bfe_u32 v17, v2, 1, 1
    v_lshl_add_u32 v19, v17, 3, v19
    v_and_b32 v17, 1, v5
    v_lshl_add_u32 v19, v17, 5, v19
    v_lshrrev_b32 v17, 1, v18
    v_xor_b32 v17, s34, v17
    v_lshl_add_u32 v19, v17, 6, v19
    v_lshl_add_u32 v19, v18, 7, v19
    v_lshl_add_u32 v24, v15, 10, v19
    v_add_u32 v24, 8192, v24
    s_mov_b32 s26, 0x200000
    s_mov_b32 s27, 0x20000
    s_lshl_b32 s41, s5, 17
    s_lshl_b32 s35, s33, 16
    s_add_u32 s41, s41, s35
    s_add_u32 s41, s41, s38
    s_lshl_b32 s35, s34, 6
    s_add_u32 s41, s41, s35
    v_lshlrev_b32 v46, 11, v14
    v_lshl_add_u32 v46, v15, 4, v46
    v_mov_b32 v49, v48
    s_lshl_b32 s35, s34, 7
    s_add_u32 s35, s35, {PAR}
    v_lshl_add_u32 v45, v15, 5, s35
    s_mov_b32 s45, 0x10000
    s_waitcnt lgkmcnt(0)
    """)
    RS = (96, 128)
    for i in range(0, 16, 2):
        a(f"v_mov_b64 v[{64+i}:{65+i}], 0")
    if exp == 8:
        for i in range(16):
            a(f"v_accvgpr_write_b32 a{i}, 0")
    for i in range(RS[1] + 8 * (4 - lag), RS[1] + 32, 2):
        a(f"v_mov_b64 v[{i}:{i+1}], 0")
    st()
    a("s_mov_b32 s44, 0")
    a("s_barrier")
    if stamp >= 3:
        a("s_memtime s[52:53]\ns_memrealtime s[54:55]")
    PV = 160
    for i, o in enumerate((0, 16, 64, 80, 256, 272, 320, 336)):
        a(f"ds_read_b128 v[{PV+4*i}:{PV+4*i+3}], v45 offset:{o}")
    def mfma(rs, s):
        if exp in (1, 4):
            return
        if exp in (5, 6, 7, 8):
            p = s & 2
            X = lambda i: f"v[{rs+8*(p+i)}:{rs+8*(p+i)+3}]"
            W = lambda i: f"v[{rs+8*(p+i)+4}:{rs+8*(p+i)+7}]"
            acc = (lambda i: f"a[{4*i}:{4*i+3}]") if exp == 8 else (lambda i: f"v[{64+4*i}:{67+4*i}]")
            order = {5: [(0, 0), (1, 0), (1, 1), (0, 1)], 6: [(0, 0), (0, 1), (1, 1), (1, 0)], 7: [(0, 0), (1, 1), (0, 1), (1, 0)], 8: [(0, 0), (1, 0), (1, 1), (0, 1)]}[exp]
            for wi, xi in order[2*(s&1):2*(s&1)+2]:
                a(f"v_mfma_f32_16x16x32_bf16 {acc(2*wi+xi)}, {W(wi)}, {X(xi)}, {acc(2*wi+xi)}")
            return
        if exp == 9:
            a(f"v_mfma_f32_32x32x16_bf16 v[64:79], v[{rs+8*s}:{rs+8*s+3}], v[{rs+8*s+4}:{rs+8*s+7}], v[64:79]")
            return
        if exp == 3:
            a(f"v_mfma_f32_16x16x32_bf16 v[{64+8*(s&1)}:{67+8*(s&1)}], v[{rs+8*s+4}:{rs+8*s+7}], v[{rs+8*s}:{rs+8*s+3}], v[{64+8*(s&1)}:{67+8*(s&1)}]")
            a(f"v_mfma_f32_16x16x32_bf16 v[{68+8*(s&1)}:{71+8*(s&1)}], v[{rs+8*(s^1)+4}:{rs+8*(s^1)+7}], v[{rs+8*s}:{rs+8*s+3}], v[{68+8*(s&1)}:{71+8*(s&1)}]")
            return
        a(f"v_mfma_f32_32x32x16_bf16 v[64:79], v[{rs+8*s+4}:{rs+8*s+7}], v[{rs+8*s}:{rs+8*s+3}], v[64:79]")
    a("L_cl:")
    for u in range(4):
        if stamp == 1 and u == 0:
            a("s_memtime s[96:97]\ns_waitcnt lgkmcnt(0)\ns_mov_b32 m0, s44\ns_nop 0\ns_movreld_b32 s54, s96")
        if stamp == 4 and u == 0:
            a("s_memtime s[96:97]\ns_memrealtime s[98:99]\ns_waitcnt lgkmcnt(0)\ns_mov_b32 m0, s44\ns_nop 0\ns_movreld_b32 s70, s96\ns_movreld_b32 s71, s98")
        rs, ro = RS[u & 1], RS[(u & 1) ^ 1]
        for s in range(4):
            if exp in (2, 4):
                a(f"s_cmp_lg_u32 s44, 0\ns_cbranch_scc1 L_sk{u}{s}")
            a(f"ds_read_b128 v[{rs+8*s}:{rs+8*s+3}], v{20+s} offset:{u*SLOT}")
            a(f"ds_read_b64_tr_b16 v[{rs+8*s+4}:{rs+8*s+5}], v24 offset:{u*SLOT+s*2048}")
            a(f"ds_read_b64_tr_b16 v[{rs+8*s+6}:{rs+8*s+7}], v24 offset:{u*SLOT+s*2048+512}")
            if exp in (2, 4):
                a(f"L_sk{u}{s}:")
            if s < lag:
                so = 4 - lag + s
                a(f"s_waitcnt lgkmcnt({3*(s+1) + 3*(3-so)})")
                mfma(ro, so)
        if u == 3:
            for i in range(5):
                a(f"v_xor_b32 v{20+i}, s45, v{20+i}")
            a("s_add_u32 s44, s44, 2\ns_cmp_eq_u32 s44, 8")
        for s in range(4 - lag):
            a(f"s_waitcnt lgkmcnt({9-3*s})")
            mfma(rs, s)
        if u == 3:
            a("s_cbranch_scc1 L_fin\ns_barrier\ns_branch L_cl")
        else:
            a("s_barrier")
    a("L_fin:")
    for s in range(4 - lag, 4):
        a(f"s_waitcnt lgkmcnt({9-3*s})")
        mfma(RS[1], s)
    if stamp:
        nst[0] = 6
    st(True)
    if stamp >= 3:
        a("s_memrealtime s[56:57]")
    if probe == 3:
        a("s_memrealtime s[92:93]\ns_waitcnt lgkmcnt(0)")
    a("s_nop 11")
    for half in range(2):
        b = 64 + 8 * half
        for i in range(0, 8, 2):
            a(f"v_pk_fma_f32 v[{b+i}:{b+i+1}], v[{b+i}:{b+i+1}], v[{PV+8*half+i}:{PV+8*half+i+1}], v[{PV+16+8*half+i}:{PV+16+8*half+i+1}]")
        for i in range(8):
            a(f"v_exp_f32 v{80+i}, v{b+i}")
        for i in range(0, 8, 2):
            a(f"v_pk_fma_f32 v[{80+i}:{80+i+1}], v[{80+i}:{80+i+1}], v[48:49], v[48:49]")
        for i in range(8):
            a(f"v_rcp_f32 v{80+i}, v{80+i}")
        for i in range(0, 8, 2):
            a(f"v_pk_mul_f32 v[{b+i}:{b+i+1}], v[{b+i}:{b+i+1}], v[{80+i}:{80+i+1}]")
        for i in range(0, 8, 2):
            a(f"v_cvt_pk_bf16_f32 v{88+4*half+i//2}, v{b+i}, v{b+i+1}")
        a(f"buffer_store_dwordx4 v[{88+4*half}:{88+4*half+3}], v46, s[24:27], s41 offen offset:{32*half} {spol}")
    if probe is not None:
        a("s_waitcnt vmcnt(0)")
        if probe == 5:
            a("s_memrealtime s[92:93]\ns_waitcnt lgkmcnt(0)")
        a(f"""
        s_cmp_lg_u32 s2, {pwg}
        s_cbranch_scc1 L_end
        s_cmp_lg_u32 s28, 4
        s_cbranch_scc1 L_end
        s_sub_u32 s92, s92, s90
        s_lshl_b32 s92, s92, 4
        s_add_u32 s92, s92, 2000
        s_min_u32 s92, s92, 100000
        L_spin:
        s_memrealtime s[94:95]
        s_waitcnt lgkmcnt(0)
        s_sub_u32 s94, s94, s90
        s_cmp_lt_u32 s94, s92
        s_cbranch_scc1 L_spin
        """)
    if stamp:
        st(True)
        a("s_waitcnt vmcnt(0)")
        st(True)
        a("L_stamp:")
        a("""
        s_memrealtime s[92:93]
        s_load_dwordx2 s[46:47], s[0:1], 64
        s_getreg_b32 s94, hwreg(HW_REG_XCC_ID)
        s_waitcnt lgkmcnt(0)
        s_lshl_b32 s3, s2, 3
        s_add_u32 s3, s3, s28
        s_lshl_b32 s3, s3, 7
        v_mov_b32 v1, s3
        """)
        for i in range(nst[0]):
            a(f"s_sub_u32 s4, s{50+2*i}, {'s90' if (stamp >= 3 and i in (2, 3)) else 's50'}")
            a(f"v_mov_b32 v2, s4")
            a(f"global_store_dword v1, v2, s[46:47] offset:{4*i}")
        if stamp == 4:
            for i in range(8):
                a(f"s_sub_u32 s4, s{70+i}, {'s90' if i & 1 else 's50'}")
                a(f"v_mov_b32 v2, s4")
                a(f"global_store_dword v1, v2, s[46:47] offset:{4*(10+i)}")
        for i, v in enumerate(("s90", "s92", "s94")):
            a(f"v_mov_b32 v2, {v}")
            a(f"global_store_dword v1, v2, s[46:47] offset:{4*(24+i)}")
    a("L_end:")
    a("s_endpgm")
    t = wrap(a.text(), 256, 512, PAR + 512, 208 if exp == 8 else 192, 100 if (stamp or probe is not None) else 50, accum=192,
             extra="  .amdhsa_float_denorm_mode_32 3\n")
    return t.replace(".p2align 8\n.type", ".p2align 12\n.type")

if __name__ == "__main__":
    out = sys.argv[1]
    kw = dict(x.split("=") for x in sys.argv[2:])
    for k in kw:
        if k in ("rot", "spol"):
            kw[k] = kw[k].replace("+", " ")
        else:
            kw[k] = int(kw[k])
    open(out, "w").write(gen(**kw))
```

```python
import sys
from common import *

NB = 16
SLOT = 16448
PAR = 8 * SLOT

def gen(D=3, stamp=0, spol="sc1", spol3=None, pf3=1, skipk=2, dist=2, KU=13, pace=2, probe=None, pwg=100, parfirst=1, bp=4, split=1, align=1, mpos=1, nokpf=0, two=0, pre=0, xf=2, pfu=0, sw=2, cpf=0, mo=0, lpol="", eo=0, pp=0):
    if spol3 is None:
        spol3 = spol
    a = Asm()
    if stamp or probe is not None:
        a("s_memrealtime s[90:91]")
    if probe == 0:
        a("s_memrealtime s[92:93]")
    if stamp:
        a("s_memtime s[50:51]")
    a("""
    s_load_dwordx2 s[8:9], s[0:1], 0
    s_load_dwordx2 s[12:13], s[0:1], 8
    s_cmp_ge_u32 s2, 256
    s_cbranch_scc1 L_end
    v_lshrrev_b32 v1, 6, v0
    v_and_b32 v2, 63, v0
    s_lshr_b32 s4, s2, 3
    v_readfirstlane_b32 s28, v1
    s_bfe_u32 s40, s2, 0x20001
    s_lshr_b32 s41, s2, 6
    s_lshl2_add_u32 s5, s40, s41
    s_and_b32 s42, s2, 1
    s_and_b32 s43, s4, 7
    s_lshl3_add_u32 s6, s42, s43
    v_lshrrev_b32 v5, 4, v2
    s_lshl_b32 s38, s6, 7
    s_bfe_u32 s3, s28, 0x10001
    s_and_b32 s48, s28, 1
    s_cmp_ge_u32 s28, 4
    s_cbranch_scc1 L_cons
    """)
    a(f"""
    s_load_dwordx8 s[16:23], s[0:1], 16
    s_lshl1_add_u32 s7, s41, s43
    s_lshl1_add_u32 s7, s7, s40
    s_add_u32 s7, s7, s42
    s_and_b32 s7, s7, 15
    """)
    if KU < 16:
        a(f"s_cmp_lt_u32 s7, {KU}\ns_cselect_b32 s7, s7, 1")
    SWAP = {0: "", 1: "s_cmp_eq_u32 s43, 3", 2: "s_and_b32 s39, s7, 7\ns_cmp_eq_u32 s43, 3\ns_cselect_b32 s39, 3, s39\ns_cmp_eq_u32 s39, 3",
            3: "s_and_b32 s39, s7, 7\ns_cmp_eq_u32 s43, 3\ns_cselect_b32 s39, 3, s39\ns_cmp_eq_u32 s6, 15\ns_cselect_b32 s39, 3, s39\ns_cmp_eq_u32 s39, 3"}[sw]
    if sw:
        SWAP += "\ns_cselect_b32 s27, s36, s33\ns_cselect_b32 s36, s33, s36"
    a(f"""
    s_mov_b32 s10, 0x200000
    s_mov_b32 s11, 0x20000
    s_mov_b32 s14, 0x600000
    s_mov_b32 s15, s11
    v_lshrrev_b32 v3, 3, v2
    v_and_b32 v4, 7, v2
    s_lshl2_add_u32 s30, s3, s48
    s_lshl_b32 s29, s5, 17
    s_lshl_b32 s32, s30, 10
    s_lshl_b32 s30, s30, 14
    s_add_u32 s29, s29, s30
    s_lshl_b32 s30, s48, 2
    v_xor_b32 v6, v4, v5
    v_xor_b32 v6, s30, v6
    v_lshlrev_b32 v6, 4, v6
    v_lshl_add_u32 v6, v3, 11, v6
    v_add_u32 v10, s29, v6
    v_add_u32 v11, {32768-2048}, v10
    v_and_b32 v7, 1, v5
    v_lshlrev_b32 v7, 2, v7
    v_xor_b32 v7, v4, v7
    v_lshlrev_b32 v7, 4, v7
    v_lshl_add_u32 v7, v3, 11, v7
    s_lshl_b32 s30, s28, 15
    s_add_u32 s31, s38, s30
    s_add_u32 s31, s31, s10
    v_add_u32 v12, s31, v7
    v_add_u32 v13, {16384-1032}, v12
    s_mul_i32 s35, s28, 2064
    s_addk_i32 s35, 0x2000
    s_mov_b32 m0, s35
    s_sub_u32 s35, s35, s32
    s_lshl_b32 s33, s7, 7
    s_mov_b32 s45, {8*SLOT}
    v_lshl_add_u32 v40, v2, 1, s38
    s_cmp_eq_u32 s33, 0
    s_cselect_b32 s36, 128, 0
    s_movk_i32 s34, 128
    s_mov_b32 s27, s33
    {SWAP}
    s_lshl_b32 s37, s36, 10
    s_cmp_lg_u32 s28, 0
    s_waitcnt lgkmcnt(0)
    """)
    PARLD = """
    s_cbranch_scc1 L_nop
    global_load_ushort v41, v40, s[16:17]
    global_load_ushort v42, v40, s[18:19]
    global_load_ushort v43, v40, s[20:21]
    global_load_ushort v44, v40, s[22:23]
    L_nop:
    """
    if stamp == 3:
        a("s_memtime s[52:53]")
    if parfirst == 1:
        a(PARLD)
    NEXTK = "s_cmp_ge_u32 s34, s33\ns_cselect_b32 s39, 128, 0\ns_add_u32 s39, s34, s39\ns_addk_i32 s34, 128"
    def dma(mid, bar=None, par=False):
        L = ["buffer_load_dwordx4 v12, s[12:15], s37 offen lds",
             f"buffer_load_dwordx4 v13, s[12:15], s37 offen offset:1032 lds\ns_mov_b32 m0, s32\ns_addk_i32 s32, {SLOT}",
             "buffer_load_dwordx4 v10, s[8:11], s36 offen lds",
             "buffer_load_dwordx4 v11, s[8:11], s36 offen offset:2048 lds\ns_mov_b32 m0, s30\ns_mov_b32 s36, s39"]
        midpos = 3 if (bar is None or bar != 3) else 2
        for n in range(4):
            if n == midpos:
                a(mid)
            if n == 1 and par:
                a(PARLD)
            a(L[n])
            if bar == n + 1:
                a(f"s_waitcnt vmcnt({4*(D-1)+bar})\ns_barrier")
                if stamp == 3:
                    a("s_memtime s[96:97]")
    def dma_xfirst(nxt):
        a(f"""
        s_mov_b32 m0, s32
        s_add_u32 s30, s32, s35
        buffer_load_dwordx4 v10, s[8:11], s36 offen lds
        buffer_load_dwordx4 v11, s[8:11], s36 offen offset:2048 lds
        s_mov_b32 m0, s30
        s_addk_i32 s32, {SLOT}
        buffer_load_dwordx4 v12, s[12:15], s37 offen lds
        {nxt}
        s_mov_b32 s36, s39
        s_add_u32 s30, s32, s35
        buffer_load_dwordx4 v13, s[12:15], s37 offen offset:1032 lds
        s_mov_b32 m0, s30
        s_lshl_b32 s37, s39, 10
        """)
    for j in range(D):
        nxt = "s_mov_b32 s39, s27" if j == 0 else NEXTK
        if (xf >> j) & 1:
            dma_xfirst(nxt)
        else:
            dma(nxt + "\ns_lshl_b32 s37, s39, 10\ns_add_u32 s30, s32, s35", None, j == 0 and parfirst == 2)
        if j == 0 and not parfirst:
            a("s_cmp_lg_u32 s28, 0" + PARLD)
    if pf3:
        a(f"""
        s_lshl1_add_u32 s31, s4, s3
        s_lshl1_add_u32 s31, s31, s42
        s_lshl4_add_u32 s31, s31, s48
        s_lshl_b32 s31, s31, 6
        s_add_u32 s31, s31, {0x200000 + 384}
        s_add_u32 s46, s12, s31
        s_addc_u32 s47, s13, 0
        s_mov_b32 s31, {(D - 1 + dist) * 131072}
        """)
        if pfu:
            a("s_add_u32 s27, s40, s42\ns_add_u32 s27, s27, 2\ns_and_b32 s27, s27, 3\ns_lshl_b32 s27, s27, 17")
            for q in range(pfu):
                a(f"s_load_dword s49, s[46:47], s27 offset:{q*4*131072 if q < 2 else (q-2)*4*131072}")
                if q == 1:
                    a("s_add_u32 s27, s27, 0x100000")
        if parfirst and not cpf:
            for kb in range(skipk, D - 1 + dist):
                a(f"s_load_dword s49, s[46:47], {kb*131072}")
    if KU < 16:
        a(f"""
        s_lshl2_add_u32 s24, s6, s28
        s_lshl_b32 s25, s5, 6
        s_add_u32 s24, s24, s25
        s_lshl_b32 s24, s24, 11
        s_add_u32 s24, s24, {KU*128 + 60}
        s_lshl2_add_u32 s26, s5, s28
        s_lshl_b32 s26, s26, 11
        s_add_u32 s26, s26, s38
        s_add_u32 s26, s26, {0x200000 + KU*131072 + 60}
        s_add_u32 s25, s24, {(15-KU)*128}
        """)
        for _ in range(pre):
            a("s_load_dwordx2 s[20:21], s[8:9], s24\ns_load_dwordx2 s[20:21], s[12:13], s26\ns_addk_i32 s24, 128\ns_add_u32 s26, s26, s11")
    a(f"""
    s_cmp_lg_u32 s28, 0
    s_cbranch_scc1 L_ld0
    v_mov_b32 v48, 0xbfb8aa3b
    s_waitcnt vmcnt({(4*(D-1), 4*D, 4*D-1)[parfirst]})
    v_lshlrev_b32 v42, 16, v42
    v_add_f32 v42, 0x3727c5ac, v42
    v_cvt_pk_bf16_f32 v42, v42, v42
    v_lshlrev_b32 v42, 16, v42
    v_sqrt_f32 v42, v42
    v_lshlrev_b32 v41, 16, v41
    v_cvt_pk_bf16_f32 v42, v42, v42
    v_lshlrev_b32 v42, 16, v42
    v_rcp_f32 v42, v42
    v_lshlrev_b32 v43, 16, v43
    v_cvt_pk_bf16_f32 v42, v42, v42
    v_lshlrev_b32 v42, 16, v42
    v_mul_f32 v42, v43, v42
    v_cvt_pk_bf16_f32 v42, v42, v42
    v_lshlrev_b32 v44, 16, v44
    v_lshlrev_b32 v42, 16, v42
    v_fma_f32 v43, -v41, v42, v44
    v_mul_f32 v42, v48, v42
    v_mul_f32 v43, v48, v43
    v_lshl_add_u32 v45, v2, 3, s45
    ds_write_b64 v45, v[42:43]
    {"s_waitcnt lgkmcnt(0)" if pp else ""}
    L_ld0:
    """)
    if pf3 and not parfirst:
        for kb in range(skipk, D - 1 + dist):
            a(f"s_load_dword s49, s[46:47], {kb*131072}")
    a(f"s_movk_i32 s44, {NB-D}\nL_ld:")
    mid = "s_cmp_ge_u32 s32, s45\ns_cselect_b32 s39, s45, 0\ns_sub_u32 s32, s32, s39\ns_add_u32 s30, s32, s35\n" + NEXTK + "\ns_lshl_b32 s37, s39, 10"
    if pf3:
        mid += "\ns_load_dword s49, s[46:47], s31\ns_add_u32 s31, s31, s11\ns_min_u32 s31, s31, 0x1e0000"
    if stamp == 3:
        mid += "\ns_waitcnt lgkmcnt(0)\ns_mov_b32 s89, m0\ns_mov_b32 m0, s44\ns_nop 0\ns_movreld_b32 s60, s96\ns_mov_b32 m0, s89"
    if KU < 16 and not nokpf:
        if pace == 4:
            mid += """
            s_cmp_gt_u32 s24, s25
            s_cbranch_scc1 L_npf
            s_load_dwordx2 s[22:23], s[8:9], s24
            s_load_dwordx2 s[22:23], s[12:13], s26
            s_load_dwordx2 s[20:21], s[8:9], s24 offset:128
            s_load_dwordx2 s[20:21], s[12:13], s26 offset:131072
            s_addk_i32 s24, 256
            s_add_u32 s26, s26, 0x40000
            L_npf:"""
        elif pace == 2:
            mid += """
            s_cmp_gt_u32 s24, s25
            s_cbranch_scc1 L_npf
            s_load_dwordx2 s[22:23], s[8:9], s24
            s_load_dwordx2 s[22:23], s[12:13], s26
            s_addk_i32 s24, 128
            s_add_u32 s26, s26, s11
            L_npf:"""
        else:
            mid += """
            s_cmp_gt_u32 s24, s25
            s_cbranch_scc1 L_npf
            s_bitcmp1_b32 s44, 0
            s_cbranch_scc1 L_pfw
            s_load_dwordx2 s[22:23], s[8:9], s24
            s_addk_i32 s24, 128
            s_branch L_npf
            L_pfw:
            s_load_dwordx2 s[22:23], s[12:13], s26
            s_add_u32 s26, s26, s11
            L_npf:"""
    if two:
        for b, o in (("s[8:9]", "s24"), ("s[12:13]", "s26")):
            mid = mid.replace(f"s_load_dwordx2 s[22:23], {b}, {o}", f"s_load_dword s22, {b}, {o}\ns_load_dword s22, {b}, {o} offset:4")
    mid += "\ns_sub_u32 s44, s44, 1\ns_cmp_lg_u32 s44, 0"
    dma(mid, bp)
    a("s_cbranch_scc1 L_ld")
    for j in range(D):
        last = j == D - 1
        a(f"s_waitcnt vmcnt({4*(D-1-j) + (1 if (last and split) else 0)})" + (" lgkmcnt(0)" if (j == 0 and not pp) else ""))
        a("s_barrier")
        if stamp == 3:
            a(f"s_memtime s[{80+2*j}:{81+2*j}]")
    if stamp == 3:
        a("s_mov_b32 s60, s96")
    if split:
        a("s_waitcnt vmcnt(0)\ns_barrier")
    a("s_branch L_stamp" if stamp else "s_endpgm")
    a("L_cons:")
    CPF = f"""
    s_lshl1_add_u32 s33, s4, s3
    s_lshl1_add_u32 s33, s33, s42
    s_lshl4_add_u32 s33, s33, s48
    s_lshl_b32 s33, s33, 6
    s_add_u32 s33, s33, {0x200000 + 384}
    s_waitcnt lgkmcnt(0)
    """ + "\n".join(f"s_load_dword s49, s[12:13], s33 offset:{kb*131072}" for kb in range(skipk, D - 1 + dist))
    a("s_load_dwordx2 s[24:25], s[0:1], 48")
    if cpf == 1:
        a(CPF)
    a(f"""
    v_and_b32 v14, 15, v2
    v_bfe_u32 v16, v2, 1, 3
    v_xor_b32 v16, v16, v5
    v_lshlrev_b32 v16, 4, v16
    v_lshl_add_u32 v16, v14, 7, v16
    s_lshl_b32 s35, s3, 12
    v_add_u32 v20, s35, v16
    v_xor_b32 v21, 64, v20
    v_and_b32 v17, 3, v2
    v_bfe_u32 v18, v2, 2, 2
    v_bfe_u32 v19, v2, 3, 1
    v_xor_b32 v19, s48, v19
    v_lshlrev_b32 v22, 4, v17
    v_lshl_add_u32 v22, v19, 6, v22
    v_lshl_add_u32 v22, v18, 7, v22
    v_mul_u32_u24 v23, 1032, v5
    s_movk_i32 s35, 0x2000
    v_add3_u32 v22, v22, v23, s35
    v_lshl_add_u32 v45, v18, 3, v17
    s_lshl_b32 s35, s48, 8
    s_add_u32 s35, s35, {PAR}
    v_lshl_add_u32 v45, v45, 3, s35
    s_lshl1_add_u32 s40, s5, s3
    s_lshl_b32 s40, s40, 16
    s_add_u32 s40, s40, s38
    s_lshl_b32 s35, s48, 6
    s_add_u32 s40, s40, s35
    s_addk_i32 s40, 0x1000
    s_mov_b32 s45, {4*SLOT}
    s_mov_b32 s30, 0xaaaaaaaa
    s_mov_b32 s31, s30
    """)
    SETUP = f"""
    v_and_b32 v15, 1, v2
    v_lshlrev_b32 v46, 4, v18
    v_and_b32 v3, 2, v2
    v_lshl_add_u32 v46, v15, 3, v46
    v_mov_b32 v47, 0x01000504
    v_lshl_add_u32 v46, v3, 1, v46
    v_mov_b32 v4, 0x07060302
    v_lshl_add_u32 v46, v5, 13, v46
    v_cndmask_b32 v47, v47, v4, s[30:31]
    v_add_u32 v46, s40, v46
    v_mov_b32 v48, 0xbfb8aa3b
    v_add_u32 v44, 0x8000, v46
    """.strip().split("\n")
    a("\n".join(SETUP))
    RS = (96, 128)
    X = lambda rs, u, s: rs + 4 * (2 * u + s)
    W = lambda rs, t, s: rs + 16 + 4 * (2 * t + s)
    ACC = lambda u, t: 64 + 4 * (2 * u + t)
    for i in list(range(64, 80, 2)) + list(range(RS[1] + 8, RS[1] + 32, 2)):
        a(f"v_mov_b64 v[{i}:{i+1}], 0")
    a("s_mov_b32 s44, 0")
    a(CPF if cpf == 2 else ("" if cpf == 1 else "s_waitcnt lgkmcnt(0)"))
    def rdx(rs, u, s, off):
        return f"ds_read_b128 v[{X(rs,u,s)}:{X(rs,u,s)+3}], v{20+s} offset:{off + u*2048}"
    def rdw(rs, t, s, tt, off):
        r = W(rs, t, s) + 2 * tt
        return f"ds_read_b64_tr_b16 v[{r}:{r+1}], v22 offset:{off + s*4128 + tt*512 + 8*t}"
    def mf(rs, u, t, s):
        return f"v_mfma_f32_16x16x32_bf16 v[{ACC(u,t)}:{ACC(u,t)+3}], v[{X(rs,u,s)}:{X(rs,u,s)+3}], v[{W(rs,t,s)}:{W(rs,t,s)+3}], v[{ACC(u,t)}:{ACC(u,t)+3}]"
    TS = ((0, 0), (1, 0), (0, 1), (1, 1)) if mo == 0 else ((0, 0), (0, 1), (1, 0), (1, 1))
    NEED = (3, 5, 8, 10) if mo == 0 else (3, 6, 8, 10)
    def phase(u, last=False, tail=""):
        rs, ro = RS[u & 1], RS[(u & 1) ^ 1]
        off = u * SLOT
        R = [rdw(rs, 0, 0, 0, off), rdw(rs, 0, 0, 1, off), rdx(rs, 0, 0, off), rdw(rs, 1, 0, 0, off), rdw(rs, 1, 0, 1, off),
             rdw(rs, 0, 1, 0, off), rdw(rs, 0, 1, 1, off), rdx(rs, 0, 1, off), rdw(rs, 1, 1, 0, off), rdw(rs, 1, 1, 1, off),
             rdx(rs, 1, 0, off), rdx(rs, 1, 1, off)]
        if mo:
            R = R[0:3] + R[5:8] + R[3:5] + R[8:]
        pos = ([2, 4, 6, 8], [2, 5, 8, 11], [3, 6, 9, 12], [1, 4, 7, 10])[mpos if last else 0]
        a("s_barrier")
        if last and stamp == 2:
            a("s_memtime s[70:71]")
        for n, r in enumerate(R, 1):
            if last and split and n == 11:
                a("s_barrier")
            a(r)
            if n in pos:
                if n == pos[0]:
                    a(f"s_waitcnt lgkmcnt({n})")
                a(mf(ro, 1, *TS[pos.index(n)]))
        a(tail)
        for need, (t, s_) in zip(NEED, TS):
            a(f"s_waitcnt lgkmcnt({12-need})\n" + mf(rs, 0, t, s_))
        return rs
    a("L_cl:")
    phase(0)
    if stamp == 1:
        a("s_cmp_lg_u32 s44, 0\ns_cbranch_scc1 L_ns\ns_memtime s[52:53]\ns_memrealtime s[54:55]\nL_ns:")
    def trip_stamp(tag, base):
        if stamp == 4:
            for k in range(4):
                a(f"s_cmp_lg_u32 s44, {k}\ns_cbranch_scc1 L_ts{tag}{k}\ns_memtime s[{base+4*k}:{base+4*k+1}]\nL_ts{tag}{k}:")
    trip_stamp("a", 68)
    phase(1)
    trip_stamp("b", 70)
    phase(2, tail="s_add_u32 s44, s44, 1\ns_cmp_eq_u32 s44, 4")
    a("s_cbranch_scc1 L_last")
    phase(3, tail="v_add_u32 v22, s45, v22\nv_add_u32 v20, s45, v20\nv_add_u32 v21, s45, v21\ns_sub_u32 s45, 0, s45")
    if pp:
        a(f"ds_read_b64 v[50:51], v45\nds_read_b64 v[52:53], v45 offset:32")
    a("s_branch L_cl")
    a("L_last:")
    if not pp:
        a(f"ds_read_b64 v[50:51], v45\nds_read_b64 v[52:53], v45 offset:32")
    if stamp == 2:
        a("s_memtime s[68:69]")
    rs = phase(3, True)
    if stamp == 2:
        a("s_memtime s[72:73]")
    a("s_waitcnt lgkmcnt(1)\n" + mf(rs, 1, 0, 0) + "\n" + mf(rs, 1, 1, 0) + "\ns_waitcnt lgkmcnt(0)\n" + mf(rs, 1, 0, 1) + "\n" + mf(rs, 1, 1, 1))
    if stamp == 1:
        a("s_memtime s[62:63]\ns_memrealtime s[56:57]")
    if probe == 3:
        a("s_memrealtime s[92:93]\ns_waitcnt lgkmcnt(0)")
    def stages(k):
        u, rp = k >> 1, 2 * (k & 1)
        z = [ACC(u, 0) + rp, ACC(u, 1) + rp]
        e = [80 + 4 * (k & 1), 82 + 4 * (k & 1)]
        P = 88 + 4 * (k & 1)
        pol = spol3 if k == 3 else spol
        return dict(
            A=[f"v_pk_fma_f32 v[{z[t]}:{z[t]+1}], v[{z[t]}:{z[t]+1}], v[{50+2*t}:{51+2*t}], v[{50+2*t}:{51+2*t}] op_sel:[0,0,1] op_sel_hi:[1,0,1]" for t in range(2)],
            B=[f"v_exp_f32 v{e[t]+i}, v{z[t]+i}" for t in range(2) for i in range(2)],
            C=[f"v_pk_fma_f32 v[{e[t]}:{e[t]+1}], v[{e[t]}:{e[t]+1}], v[48:49], v[48:49] op_sel_hi:[1,0,0]" for t in range(2)],
            D=[f"v_rcp_f32 v{e[t]+i}, v{e[t]+i}" for t in range(2) for i in range(2)],
            E=[f"v_pk_mul_f32 v[{z[t]}:{z[t]+1}], v[{z[t]}:{z[t]+1}], v[{e[t]}:{e[t]+1}]" for t in range(2)],
            F=[f"v_cvt_pk_bf16_f32 v{P+r}, v{z[0]+r}, v{z[1]+r}" for r in range(2)],
            G=[f"v_mov_b32_dpp v{P+2+r}, v{P+r} quad_perm:[1,0,3,2] row_mask:0xf bank_mask:0xf" for r in range(2)],
            H=[f"v_perm_b32 v{P+r}, v{P+r}, v{P+2+r}, v47" for r in range(2)],
            S=[f"global_store_dword v{44 if u else 46}, v{P+r}, s[24:25] offset:{2048*(rp+r)-4096} {pol}" for r in range(2)])
    U = [stages(k) for k in range(4)]
    seq = [U[0]["A"][0], U[1]["A"][0], U[0]["A"][1], U[1]["A"][1]] + U[0]["B"]
    for k in range(4):
        c, n, p = U[k], (U[k + 1] if k < 3 else None), (U[k - 1] if k else None)
        if n:
            seq += n["B"][:2] + c["C"] + ([p["S"][0]] if p else []) + c["D"][:2]
            seq += (U[k + 2]["A"] if k < 2 else []) + c["D"][2:] + ([p["S"][1]] if p else [])
            seq += c["E"] + c["F"] + n["B"][2:] + c["G"] + c["H"]
        else:
            seq += c["C"] + [p["S"][0]] + c["D"] + c["E"] + c["F"] + [p["S"][1]] + c["G"] + [c["H"][0], c["S"][0], c["H"][1], c["S"][1]]
    if eo == 1:
        seq = [U[0]["A"][0], U[1]["A"][0], U[0]["A"][1], U[1]["A"][1]]
        for k in range(4):
            c, n = U[k], (U[k + 1] if k < 3 else None)
            seq += (c["B"] if k == 0 else c["B"][2:]) + c["C"] + c["D"] + c["E"] + c["F"]
            seq += (n["B"][:2] if n else ["s_nop 0", "s_nop 0"]) + c["G"] + [c["H"][0], c["S"][0], c["H"][1], c["S"][1]]
            if k == 0:
                seq += U[2]["A"] + U[3]["A"]
    if align:
        a(".p2align 3")
    allops = sorted(l for k in range(4) for v in U[k].values() for l in v)
    assert sorted(l for l in seq if l.startswith(("v_pk", "v_exp", "v_rcp", "v_cvt", "v_mov", "v_perm", "global"))) == allops
    step = (len(seq) + 5) // 6
    for n, l in enumerate(seq):
        if stamp == 2 and n % step == 0:
            a(f"s_memtime s[{74+2*(n//step)}:{75+2*(n//step)}]")
        a(l)
    if probe in (9, 10, 11):
        a(f"""
        s_waitcnt vmcnt(0)
        s_memrealtime s[92:93]
        s_load_dwordx2 s[46:47], s[0:1], 56
        s_waitcnt lgkmcnt(0)
        s_sleep 127
        s_mov_b64 exec, 1
        v_mov_b32 v1, 0
        v_mov_b32 v2, {"s92" if probe != 11 else "s90"}
        s_not_b32 s93, s90
        v_mov_b32 v3, s93
        v_mov_b32 v4, 1
        global_atomic_umax v1, v2, s[46:47] sc1
        global_atomic_umax v1, v3, s[46:47] offset:4 sc1
        s_waitcnt vmcnt(0)
        global_atomic_add v1, v4, s[46:47] offset:8 sc1
        s_cmp_lg_u32 s2, {pwg}
        s_cbranch_scc1 L_end
        s_cmp_lg_u32 s28, 4
        s_cbranch_scc1 L_end
        L_poll:
        s_sleep 8
        global_load_dwordx3 v[4:6], v1, s[46:47] sc0 sc1
        s_memrealtime s[94:95]
        s_waitcnt vmcnt(0) lgkmcnt(0)
        v_readfirstlane_b32 s4, v6
        s_sub_u32 s94, s94, s90
        s_cmp_gt_u32 s94, 20000
        s_cbranch_scc1 L_end
        s_cmp_lt_u32 s4, 1024
        s_cbranch_scc1 L_poll
        global_load_dwordx2 v[4:5], v1, s[46:47] sc0 sc1
        s_waitcnt vmcnt(0)
        v_readfirstlane_b32 s92, v4
        v_readfirstlane_b32 s93, v5
        s_nop 3
        s_not_b32 s93, s93
        s_sub_u32 s92, s92, s93
        s_lshl_b32 s92, s92, 4
        {"s_mov_b32 s92, 0" if probe == 10 else ""}
        s_add_u32 s92, s92, 10000
        s_min_u32 s92, s92, 100000
        L_spin:
        s_memrealtime s[94:95]
        s_waitcnt lgkmcnt(0)
        s_sub_u32 s94, s94, s93
        s_cmp_lt_u32 s94, s92
        s_cbranch_scc1 L_spin
        """)
    elif probe is not None:
        a("s_waitcnt vmcnt(0)")
        if probe == 5:
            a("s_memrealtime s[92:93]\ns_waitcnt lgkmcnt(0)")
        a(f"""
        s_cmp_lg_u32 s2, {pwg}
        s_cbranch_scc1 L_end
        s_cmp_lg_u32 s28, 4
        s_cbranch_scc1 L_end
        s_sub_u32 s92, s92, s90
        s_lshl_b32 s92, s92, 4
        s_add_u32 s92, s92, 2000
        s_min_u32 s92, s92, 100000
        L_spin:
        s_memrealtime s[94:95]
        s_waitcnt lgkmcnt(0)
        s_sub_u32 s94, s94, s90
        s_cmp_lt_u32 s94, s92
        s_cbranch_scc1 L_spin
        """)
    if stamp:
        a("s_memtime s[64:65]\ns_waitcnt vmcnt(0)\ns_memtime s[66:67]")
        a("L_stamp:")
        a("""
        s_memrealtime s[92:93]
        s_load_dwordx2 s[46:47], s[0:1], 64
        s_getreg_b32 s94, hwreg(HW_REG_XCC_ID)
        s_waitcnt lgkmcnt(0)
        s_lshl_b32 s3, s2, 3
        s_add_u32 s3, s3, s28
        s_lshl_b32 s3, s3, 7
        v_mov_b32 v1, s3
        """)
        if stamp == 4:
            for i, r in enumerate(list(range(68, 84, 2)) + [64, 66]):
                a(f"s_sub_u32 s4, s{r}, s50\nv_mov_b32 v2, s4\nglobal_store_dword v1, v2, s[46:47] offset:{4*i}")
        if stamp == 3:
            regs = [60 + (NB - D - 1 - j) for j in range(NB - D)] + [80 + 2 * j for j in range(D)]
            for i, r in enumerate(regs):
                a(f"s_sub_u32 s4, s{r}, s52\nv_mov_b32 v2, s4\nglobal_store_dword v1, v2, s[46:47] offset:{4*i}")
        if stamp == 2:
            regs = [68, 70, 72, 74, 76, 78, 80, 82, 84, 64, 66]
            for i in range(len(regs) - 1):
                a(f"s_sub_u32 s4, s{regs[i+1]}, s{regs[i]}")
                a(f"v_mov_b32 v2, s4")
                a(f"global_store_dword v1, v2, s[46:47] offset:{4*i}")
        for i in (1, 2, 3, 6, 7, 8) if stamp == 1 else ():
            a(f"s_sub_u32 s4, s{50+2*i}, {'s90' if i in (2, 3) else 's50'}")
            a(f"v_mov_b32 v2, s4")
            a(f"global_store_dword v1, v2, s[46:47] offset:{4*i}")
        for i, v in enumerate(("s90", "s92", "s94")):
            a(f"v_mov_b32 v2, {v}")
            a(f"global_store_dword v1, v2, s[46:47] offset:{4*(24+i)}")
    a("L_end:")
    a("s_endpgm")
    if lpol:
        a.lines = [l.replace(" lds", f" {lpol} lds") if "buffer_load" in l else l for l in a.lines]
    t = wrap(a.text(), 256, 512, PAR + 512, 160, 100 if (stamp or probe is not None) else 50,
             extra="  .amdhsa_float_denorm_mode_32 3\n")
    return t.replace(".p2align 8\n.type", ".p2align 12\n.type")

if __name__ == "__main__":
    out = sys.argv[1]
    kw = dict(x.split("=") for x in sys.argv[2:])
    for k in kw:
        if k in ("spol", "spol3", "lpol"):
            kw[k] = kw[k].replace("+", " ")
        else:
            kw[k] = int(kw[k])
    open(out, "w").write(gen(**kw))
```
